```python
import torch

def _softmax(x, axis=-1):
    return torch.softmax(x, dim=axis)
def _gelu(x):
    return torch.nn.functional.gelu(x, approximate="tanh")
def _silu(x):
    return torch.nn.functional.silu(x)
def _sigmoid(x):
    return torch.sigmoid(x)
def _layernorm(x, axis=-1, eps=1e-5):
    m = x.mean(dim=axis, keepdim=True)
    v = x.var(dim=axis, keepdim=True, unbiased=False)
    return (x - m) / torch.sqrt(v + eps)
def _scatter_add(tgt, idx, src, axis=0):
    return tgt.clone().index_add_(axis, idx, src)
def _segment_sum(src, seg, n):
    out = torch.zeros((n,) + src.shape[1:], dtype=src.dtype)
    return out.index_add_(0, seg, src)
def _pad(x, pw):
    flat = tuple(v for pair in reversed(pw) for v in pair)
    return torch.nn.functional.pad(x, flat)

kernel_name = 'gated_mix__softmax_full_mha__glu_gated_glu__prompt'

def setup_inputs():

    _w = (lambda a: (lambda t: t.to(torch.bfloat16) if t.is_floating_point() else t)(torch.as_tensor(a)))
    def _A_setup():
        B, S, D = 1, 2048, 448
        return {
            "x": _w((lambda *s: torch.randn(*s, dtype=torch.bfloat16) * 0.05)(B, S, D)),
            "wqkv": _w((lambda *s: torch.randn(*s, dtype=torch.bfloat16) * 0.8)(D, 3 * D)),
            "wo": _w((lambda *s: torch.randn(*s, dtype=torch.bfloat16) * 0.1)(D, D)),
        }
    _A_in = _A_setup()

    def _B_setup():
        B, S, D, F = 1, 2048, 448, 1792
        return {
            "x": _w((lambda *s: torch.randn(*s, dtype=torch.bfloat16) * 0.05)(B, S, D)),
            "w_gate": _w((lambda *s: torch.randn(*s, dtype=torch.bfloat16) * 0.4)(D, F)),
            "w_up": _w((lambda *s: torch.randn(*s, dtype=torch.bfloat16) * 0.05)(D, F)),
            "w_down": _w((lambda *s: torch.randn(*s, dtype=torch.bfloat16) * 0.05)(F, D)),
        }
    _B_in = _B_setup()

    return {
        "A_x": _A_in["x"],
        "A_wqkv": _A_in["wqkv"],
        "A_wo": _A_in["wo"],
        "B_x": _B_in["x"],
        "B_w_gate": _B_in["w_gate"],
        "B_w_up": _B_in["w_up"],
        "B_w_down": _B_in["w_down"],
        "gate_w": _w((lambda *s: torch.randn(*s, dtype=torch.bfloat16) * 0.05)(448) * 16.0),
    }

def reference(A_x, A_wqkv, A_wo, B_x, B_w_gate, B_w_up, B_w_down, gate_w):
    def _A_ref(x, wqkv, wo):
        B, S, D = x.shape
        H = 16; Dh = D // H
        qkv = (lambda x, *d: x.permute(*d))((x @ wqkv).reshape(B, S, 3, H, Dh), 2, 0, 3, 1, 4)
        q, k, v = qkv[0], qkv[1], qkv[2]
        scale = Dh ** -0.5
        scores = torch.einsum("bhqd,bhkd->bhqk", q, k) * scale
        p = _softmax(scores, axis=-1)
        o = torch.einsum("bhqk,bhkd->bhqd", p, v)
        return (lambda x, *d: x.permute(*d))(o, 0, 2, 1, 3).reshape(B, S, D) @ wo

    def _B_ref(x, w_gate, w_up, w_down):
        g = torch.einsum("bsd,df->bsf", x, w_gate)
        u = torch.einsum("bsd,df->bsf", x, w_up)
        h = _sigmoid(g) * u
        return torch.einsum("bsf,fd->bsd", h, w_down)

    x = A_x
    g = _sigmoid((x * gate_w).sum(-1, keepdims=True))
    a = _A_ref(x, A_wqkv, A_wo)
    b = _B_ref(x, B_w_gate, B_w_up, B_w_down)
    return g * a + (1 - g) * b
```

```python
import re

TRANS = ("v_exp_f32", "v_log_f32", "v_rcp_f32", "v_rsq_f32", "v_sqrt_f32")

def _regs(tok):
    tok = tok.strip()
    neg = tok.startswith("-")
    if neg: tok = tok[1:]
    if tok.startswith("|") and tok.endswith("|"): tok = tok[1:-1]
    m = re.fullmatch(r"([vsa])(\d+)", tok)
    if m: return m.group(1), {int(m.group(2))}
    m = re.fullmatch(r"([vsa])\[(\d+):(\d+)\]", tok)
    if m: return m.group(1), set(range(int(m.group(2)), int(m.group(3)) + 1))
    if tok == "vcc": return "s", {106, 107}
    if tok == "vcc_lo": return "s", {106}
    if tok == "vcc_hi": return "s", {107}
    if tok == "exec": return "s", {126, 127}
    if tok == "m0": return "s", {124}
    return None, set()

class Ins:
    __slots__ = ("text", "mn", "cls", "vw", "vr", "sw", "sr", "mfA", "mfC", "mfD", "trans", "dpp", "perm", "wide_store", "ldsdma", "rdlane", "states", "dot")
    def __init__(self, text):
        self.text = text
        t = text.split(";")[0].strip()
        parts = t.split(None, 1)
        mn = parts[0]
        self.mn = mn
        rest = parts[1] if len(parts) > 1 else ""
        ops = []
        depth = 0; cur = ""
        for ch in rest:
            if ch == "[": depth += 1
            if ch == "]": depth -= 1
            if ch == "," and depth == 0:
                ops.append(cur.strip()); cur = ""
            else:
                cur += ch
        if cur.strip(): ops.append(cur.strip())
        mods = ""
        if ops:
            sp = ops[-1].split(None, 1)
            if len(sp) > 1 and not sp[0].endswith(":"):
                ops[-1] = sp[0]; mods = sp[1]
        self.vw = set(); self.vr = set(); self.sw = set(); self.sr = set()
        self.mfA = set(); self.mfC = set(); self.mfD = set()
        self.trans = mn.replace("_e32", "").replace("_e64", "") in TRANS
        self.dpp = ("quad_perm" in mods or "row_" in mods or "dpp" in mn)
        self.perm = mn.startswith("v_permlane")
        self.wide_store = False; self.ldsdma = False
        self.rdlane = mn.startswith("v_readfirstlane") or mn.startswith("v_readlane")
        self.dot = mn.startswith("v_dot")
        self.states = 1
        def add(tok, vs, ss):
            k, r = _regs(tok)
            if k == "v": vs |= r
            elif k == "s": ss |= r
            elif k == "a": raise ValueError("agpr unsupported")
        if mn == "s_nop":
            self.cls = "nop"; self.states = int(ops[0], 0) + 1
        elif mn.startswith("v_mfma"):
            self.cls = "mfma"
            add(ops[0], self.mfD, self.sw); add(ops[1], self.mfA, self.sr); add(ops[2], self.mfA, self.sr); add(ops[3], self.mfC, self.sr)
            self.vw = set(self.mfD); self.vr = self.mfA | self.mfC
        elif mn.startswith("v_"):
            self.cls = "valu"
            if mn.startswith("v_cmp"):
                add(ops[0], self.vw, self.sw)
                for o in ops[1:]: add(o, self.vr, self.sr)
            elif mn.startswith("v_permlane32_swap") or mn.startswith("v_permlane16_swap") or mn.startswith("v_swap"):
                for o in ops[:2]:
                    add(o, self.vw, self.sw); add(o, self.vr, self.sr)
            elif "_co_" in mn:
                add(ops[0], self.vw, self.sw); add(ops[1], self.vw, self.sw)
                for o in ops[2:]: add(o, self.vr, self.sr)
            else:
                add(ops[0], self.vw, self.sw)
                for o in ops[1:]: add(o, self.vr, self.sr)
                if mn.startswith(("v_fmac", "v_pk_fmac", "v_dot2c", "v_mac", "v_writelane")): add(ops[0], self.vr, self.sr)
                if mn.startswith("v_cndmask") and len(ops) == 3: self.sr |= {106, 107}
        elif mn.startswith(("buffer_", "global_")):
            self.cls = "vmem"
            lds = (" lds" in (" " + mods)) or "_lds_" in mn
            self.ldsdma = lds
            if lds: self.sr |= {124}
            if "store" in mn or "atomic" in mn:
                for o in ops: add(o, self.vr, self.sr)
                self.wide_store = mn.endswith("x4") or mn.endswith("x3")
                if self.wide_store:
                    dtok = ops[0] if mn.startswith("buffer_") else ops[1]
                    self.mfD = _regs(dtok)[1]
            elif lds:
                for o in ops: add(o, self.vr, self.sr)
            else:
                add(ops[0], self.vw, self.sw)
                for o in ops[1:]: add(o, self.vr, self.sr)
        elif mn.startswith("ds_"):
            self.cls = "ds"
            if mn.startswith(("ds_read", "ds_bpermute", "ds_permute", "ds_swizzle")):
                add(ops[0], self.vw, self.sw)
                for o in ops[1:]: add(o, self.vr, self.sr)
            else:
                for o in ops: add(o, self.vr, self.sr)
        elif mn.startswith("s_"):
            self.cls = "salu"
            if mn in ("s_waitcnt", "s_barrier", "s_endpgm", "s_branch", "s_setprio", "s_sleep") or mn.startswith("s_cbranch"):
                pass
            elif mn.startswith("s_cmp"):
                for o in ops: add(o, set(), self.sr)
            else:
                add(ops[0], set(), self.sw)
                for o in ops[1:]: add(o, set(), self.sr)
        else:
            raise ValueError("unknown instr: " + text)

def need(p, c):
    n = 0
    if p.cls == "valu":
        if c.cls == "mfma" and (p.vw & c.vr): n = max(n, 2)
        if c.cls == "valu":
            if p.trans and (p.vw & (c.vr | c.vw)): n = max(n, 1)
            if p.dot and (p.vw & (c.vr | c.vw)): n = max(n, 3)
            if c.rdlane and (p.vw & c.vr): n = max(n, 1)
            if (c.dpp or c.perm) and (p.vw & c.vr): n = max(n, 2)
            if p.sw & c.sr: n = max(n, 4 if c.rdlane else 2)
        if c.cls == "vmem" and (p.sw & c.sr): n = max(n, 5)
        if p.dot and c.cls in ("vmem", "ds", "mfma") and (p.vw & (c.vr | c.vw)): n = max(n, 3)
    if p.cls == "mfma":
        if c.cls == "mfma":
            if p.mfD & c.mfA: n = max(n, 12)
            if p.mfD & c.mfC and p.mfD != c.mfC: n = max(n, 10)
            if p.mfD & c.mfD and p.mfD != c.mfC: n = max(n, 12)
        else:
            if p.mfD & (c.vr | c.vw): n = max(n, 12)
            if c.cls in ("valu", "ds", "vmem") and (p.mfC & c.vw): n = max(n, 7)
    if p.cls == "salu" and 124 in p.sw and c.ldsdma: n = max(n, 1)
    if p.cls == "vmem" and p.wide_store and (p.mfD & c.vw): n = max(n, 2)
    return n

class Asm:
    def __init__(self):
        self.items = []
    def raw(self, s): self.items.append(("raw", s))
    def label(self, s): self.items.append(("raw", s + ":"))
    def __call__(self, s):
        for line in s.strip().split("\n"):
            line = line.strip()
            if not line or line.startswith(";"): continue
            if line.endswith(":"): self.items.append(("raw", line)); continue
            self.items.append(("ins", line))
    def fence(self):
        self.items.append(("fence", ""))
    def opt(self, on):
        self.items.append(("opt", on))
    def render(self):
        out = []
        hist = []
        pos = 0
        nn = 0
        for kind, s in self.items:
            if kind == "raw":
                out.append(s); continue
            if kind == "fence":
                hist = []; continue
            if kind == "opt":
                if s: pos0 = pos; hist0 = list(hist)
                else:
                    hist = hist0 + [(p, pos0) for p, pp in hist if pp > pos0]
                    pos = pos0
                continue
            ins = Ins(s)
            req = 0
            for p, ppos in hist:
                n = need(p, ins)
                if n:
                    have = pos - ppos
                    if have < n: req = max(req, n - have)
            while req > 0:
                k = min(req, 16)
                out.append(f"    s_nop {k-1}")
                pos += k; req -= k; nn += k
            out.append("    " + s)
            pos += ins.states
            hist.append((ins, pos))
            hist = [(p, pp) for p, pp in hist if pos - pp < 24]
        self.nops = nn
        return "\n".join(out) + "\n"

class Counter:
    def __init__(self, name, maxv):
        self.name = name; self.maxv = maxv; self.issued = 0; self.done = 0
    def issue(self):
        self.issued += 1
        return self.issued
    def wait_for(self, a, opid):
        if opid <= self.done: return
        n = self.issued - opid
        assert n <= self.maxv, (self.name, n)
        a(f"s_waitcnt {self.name}({n})")
        self.done = opid
```

```python
import struct
from asmlib import Asm, Counter
from layout import *

def f32hex(x):
    return "0x%08x" % struct.unpack("<I", struct.pack("<f", x))[0]

XBASE = 0
RING = 7 * 16384
SLOT = 7168
NSLOT = 6
TRA = RING + NSLOT * SLOT
K1_LDS = TRA + 6144
NSA = 28
NSB = 14
NS = NSA + NSB

def emit_k1(a, P):
    ST = P.get("k1_store", "")
    XRATE = P.get("k1_xrate", 1)
    D = P.get("k1_depth", 4)
    a.raw(".p2align 8")
    a.raw(".globl k1_kernel")
    a.raw(".type k1_kernel,@function")
    a.label("k1_kernel")
    a.fence()
    a("""
    s_cmp_ge_u32 s2, 256
    s_cbranch_scc1 K1_END
    """)
    if P.get("stamp"):
        a("s_memtime s[62:63]\ns_memrealtime s[64:65]")
    a("""
    s_load_dwordx16 s[16:31], s[0:1], 0
    s_load_dwordx2 s[32:33], s[0:1], 80
    v_lshrrev_b32 v2, 6, v0
    v_and_b32 v1, 63, v0
    s_and_b32 s6, s2, 7
    s_lshr_b32 s7, s2, 3
    v_readfirstlane_b32 s3, v2
    s_and_b32 s4, s6, 1
    s_lshl_b32 s4, s4, 3
    s_and_b32 s8, s7, 7
    s_add_u32 s4, s4, s8
    s_lshr_b32 s5, s6, 1
    s_lshl_b32 s5, s5, 2
    s_lshr_b32 s8, s7, 3
    s_add_u32 s5, s5, s8
    """)
    a("""
    s_cmp_ge_u32 s3, 4
    s_cbranch_scc0 K1_CONS
    s_cmp_eq_u32 s3, 4
    s_cbranch_scc1 K1_LD0
    s_cmp_eq_u32 s3, 5
    s_cbranch_scc1 K1_LD1
    s_cmp_eq_u32 s3, 6
    s_cbranch_scc1 K1_LD2
    s_branch K1_LD3
    """)
    for lw in range(4):
        emit_loader(a, lw, P, XRATE)
    emit_consumer(a, P, ST, D)
    a.label("K1_END")
    a("s_endpgm")

def emit_loader(a, lw, P, XRATE):
    a.label(f"K1_LD{lw}")
    a.fence()
    vm = Counter("vmcnt", 63)
    a(f"""
    v_lshrrev_b32 v3, 3, v1
    v_mul_u32_u24 v2, 896, v3
    v_lshrrev_b32 v3, 4, v1
    v_add_u32 v3, {4*(lw&1)}, v3
    v_and_b32 v3, 7, v3
    v_and_b32 v4, 7, v1
    v_xor_b32 v3, v3, v4
    v_lshl_add_u32 v2, v3, 4, v2
    s_lshl_b32 s8, s4, 7
    s_add_u32 s8, s8, {8*lw}
    s_mul_i32 s8, s8, 896
    v_add_u32 v2, s8, v2
    s_mul_i32 s9, s5, 224
    s_mul_i32 s10, s5, 56
    """)
    gu = [q for q in (lw, lw + 4) if q < 7]
    qk = [q for q in (lw, lw + 4) if q < 6]
    for i, q in enumerate(gu):
        a(f"""
        v_add_u32 v3, {64*q}, v1
        v_mul_u32_u24 v4, 2341, v3
        v_lshrrev_b32 v4, 16, v4
        v_mul_u32_u24 v5, 28, v4
        v_sub_u32 v5, v3, v5
        v_cmp_le_u32 vcc, 14, v5
        v_subrev_u32 v6, 14, v5
        v_cndmask_b32 v5, v5, v6, vcc
        v_cndmask_b32 v{20+i}, 0, 1, vcc
        v_mul_u32_u24 v4, 3584, v4
        v_lshl_add_u32 v4, v5, 4, v4
        v_add_u32 v{16+i}, s9, v4
        """)
    for i, q in enumerate(qk):
        a(f"""
        v_add_u32 v3, {64*q}, v1
        v_mul_u32_u24 v4, 5462, v3
        v_lshrrev_b32 v4, 16, v4
        v_mul_u32_u24 v5, 12, v4
        v_sub_u32 v5, v3, v5
        v_lshrrev_b32 v6, 2, v5
        v_and_b32 v5, 3, v5
        v_mul_u32_u24 v4, 2688, v4
        v_mul_u32_u24 v6, 896, v6
        v_add_u32 v4, v4, v6
        v_lshl_add_u32 v4, v5, 4, v4
        v_add_u32 v{12+i}, s10, v4
        """)
    a("s_waitcnt lgkmcnt(0)")
    a(f"""
    s_mov_b32 s36, s16
    s_mov_b32 s37, s17
    s_mov_b32 s38, {2048*896}
    s_mov_b32 s39, 0x00020000
    s_mov_b32 s40, s18
    s_mov_b32 s41, s19
    s_mov_b32 s42, {448*2688}
    s_mov_b32 s43, 0x00020000
    s_mov_b32 s50, {16*3584}
    s_mov_b32 s51, 0
    """)
    def xpiece(kc, i):
        p = lw + 4 * i
        a(f"s_mov_b32 m0, {XBASE + kc*16384 + p*1024}")
        a(f"s_mov_b32 s11, {28672*i + 128*kc}")
        a("buffer_load_dwordx4 v2, s[36:39], s11 offen lds")
        return vm.issue()
    first_x = [xpiece(0, i) for i in range(4)]
    for i, q in enumerate(gu):
        a(f"""
        v_cmp_eq_u32 vcc, 1, v{20+i}
        v_mov_b32 v3, s24
        v_mov_b32 v4, s26
        v_mov_b32 v5, s25
        v_mov_b32 v6, s27
        v_cndmask_b32 v3, v3, v4, vcc
        v_cndmask_b32 v5, v5, v6, vcc
        v_add_co_u32 v{8+2*i}, vcc, v3, v{16+i}
        v_addc_co_u32 v{9+2*i}, vcc, 0, v5, vcc
        """)
    def wstage(s):
        last = 0
        slot = s % NSLOT
        if s < NSA:
            for i, q in enumerate(gu):
                a(f"s_mov_b32 m0, {RING + slot*SLOT + q*1024}")
                a("s_nop 0")
                a(f"global_load_lds_dwordx4 v[{8+2*i}:{9+2*i}], off")
                last = vm.issue()
                if s + 1 < NSA:
                    a(f"v_lshl_add_u64 v[{8+2*i}:{9+2*i}], v[{8+2*i}:{9+2*i}], 0, s[50:51]")
        else:
            sb = s - NSA
            for i, q in enumerate(qk):
                a(f"s_mov_b32 m0, {RING + slot*SLOT + q*1024}")
                a(f"s_mov_b32 s11, {sb*32*2688}")
                a(f"buffer_load_dwordx4 v{12+i}, s[40:43], s11 offen lds")
                last = vm.issue()
        return last
    needid = {}
    def note(stage, opid):
        needid[stage] = max(needid.get(stage, 0), opid)
    note(0, first_x[-1])
    for s in range(4): note(s, wstage(s))
    for i in range(4): note(4, xpiece(1, i))
    for s in range(4, NSLOT): note(s, wstage(s))
    xq = [(kc, i) for kc in range(2, 7) for i in range(4)]
    gate_code = []
    if lw == 3:
        a(f"""
        s_lshl_b32 s8, s4, 7
        s_lshl_b32 s12, s5, 3
        s_add_u32 s8, s8, s12
        v_lshrrev_b32 v3, 3, v1
        v_add_u32 v3, s8, v3
        v_and_b32 v4, 7, v1
        v_mul_u32_u24 v4, 112, v4
        v_mul_u32_u24 v5, 896, v3
        v_add_u32 v5, v5, v4
        v_lshlrev_b32 v24, 2, v3
        s_mov_b32 s44, s30
        s_mov_b32 s45, s31
        s_mov_b32 s46, 896
        s_mov_b32 s47, 0x00020000
        """)
        for j in range(7):
            a(f"buffer_load_dwordx4 v[{32+4*j}:{35+4*j}], v5, s[36:39], 0 offen offset:{16*j}")
            vm.issue()
            a(f"buffer_load_dwordx4 v[{64+4*j}:{67+4*j}], v4, s[44:47], 0 offen offset:{16*j}")
            gid = vm.issue()
        note(8, gid)
        gate_code.append("v_mov_b32 v25, 0\nv_mov_b32 v26, 0")
        for j in range(0, 28, 2):
            gate_code.append(f"v_dot2_f32_bf16 v25, v{32+j}, v{64+j}, v25\nv_dot2_f32_bf16 v26, v{33+j}, v{65+j}, v26")
        gate_code.append("""
        v_add_f32 v25, v25, v26
        v_add_f32 v25, v25, v25 quad_perm:[1,0,3,2] row_mask:0xf bank_mask:0xf
        v_add_f32 v25, v25, v25 quad_perm:[2,3,0,1] row_mask:0xf bank_mask:0xf
        v_add_f32 v25, v25, v25 row_half_mirror row_mask:0xf bank_mask:0xf
        """ + f"""
        v_mul_f32 v25, {f32hex(-1.4426950408889634)}, v25
        v_exp_f32 v25, v25
        v_add_f32 v25, 1.0, v25
        v_rcp_f32 v25, v25
        s_add_u32 s44, s32, {WS_G}
        s_addc_u32 s45, s33, 0
        s_mov_b32 s46, 8192
        buffer_store_dword v25, v24, s[44:47], 0 offen
        """)
    tr_lds = TRA + 2048 * lw if lw < 3 else RING
    tr_s0, tr_s1 = (10, 16) if lw < 3 else (38, 41)
    def tr_issue():
        a(f"""
        s_lshl_b32 s70, s2, 2
        s_add_u32 s70, s70, {lw}
        s_min_u32 s70, s70, 1007
        s_mul_i32 s71, s70, 9363
        s_lshr_b32 s71, s71, 16
        s_mul_i32 s72, s71, 7
        s_sub_u32 s72, s70, s72
        s_lshl_b32 s73, s71, 4
        s_sub_u32 s74, s71, 112
        s_lshr_b32 s75, s74, 1
        s_mul_i32 s75, s75, 28
        s_and_b32 s74, s74, 1
        s_lshl_b32 s74, s74, 4
        s_add_u32 s75, s75, s74
        s_cmp_lt_u32 s71, 112
        s_cselect_b32 s73, s73, s75
        s_cselect_b32 s76, s28, s20
        s_cselect_b32 s77, s29, s21
        s_mov_b32 s78, {1792*896}
        s_cselect_b32 s78, s78, {448*896}
        s_mov_b32 s79, 0x00020000
        s_mul_i32 s73, s73, 896
        s_lshl_b32 s74, s72, 7
        s_add_u32 s73, s73, s74
        v_lshrrev_b32 v110, 3, v1
        v_mul_u32_u24 v110, 896, v110
        v_and_b32 v111, 7, v1
        v_lshl_add_u32 v110, v111, 4, v110
        v_add_u32 v110, s73, v110
        v_add_u32 v111, {8*896}, v110
        s_mov_b32 m0, {tr_lds}
        buffer_load_dwordx4 v110, s[76:79], 0 offen lds
        s_mov_b32 m0, {tr_lds + 1024}
        buffer_load_dwordx4 v111, s[76:79], 0 offen lds
        """)
        vm.issue()
        return vm.issue()
    def tr_finish(opid):
        vm.wait_for(a, opid)
        a(f"""
        v_lshrrev_b32 v110, 5, v1
        v_lshrrev_b32 v111, 2, v1
        v_and_b32 v111, 3, v111
        v_lshl_add_u32 v110, v110, 2, v111
        v_lshlrev_b32 v110, 7, v110
        v_lshrrev_b32 v111, 4, v1
        v_and_b32 v111, 1, v111
        v_lshl_add_u32 v110, v111, 5, v110
        v_and_b32 v111, 3, v1
        v_lshl_add_u32 v110, v111, 3, v110
        v_add_u32 v110, {tr_lds}, v110
        ds_read_b64_tr_b16 v[112:113], v110
        ds_read_b64_tr_b16 v[114:115], v110 offset:1024
        ds_read_b64_tr_b16 v[116:117], v110 offset:64
        ds_read_b64_tr_b16 v[118:119], v110 offset:1088
        s_mul_i32 s72, s72, {2*HSTR}
        s_lshl_b32 s71, s71, 10
        s_add_u32 s72, s72, s71
        s_add_u32 s72, s72, {WS_W2}
        s_add_u32 s73, s72, {HSTR}
        s_mov_b32 s76, s32
        s_mov_b32 s77, s33
        s_mov_b32 s78, {WS_END}
        v_lshlrev_b32 v110, 4, v1
        s_waitcnt lgkmcnt(0)
        buffer_store_dwordx4 v[112:115], v110, s[76:79], s72 offen
        buffer_store_dwordx4 v[116:119], v110, s[76:79], s73 offen
        """)
        vm.issue(); vm.issue()
    stamp = P.get("stamp") and lw == 0
    def do_stamp(reg, idx):
        a(f"s_memtime s[60:61]\ns_waitcnt lgkmcnt(0)\nv_writelane_b32 v{reg}, s60, {idx}")
    if stamp:
        do_stamp(100, 63)
        a("v_writelane_b32 v100, s62, 62\nv_writelane_b32 v100, s64, 61")
    for s in range(NS):
        vm.wait_for(a, needid.get(s, 0))
        if stamp: do_stamp(100, s)
        a("s_barrier")
        if stamp: do_stamp(101, s)
        if P.get("exp_nodma"):
            xq = []
        if s >= 2 and s + 4 < NS and not P.get("exp_nodma"):
            note(s + 4, wstage(s + 4))
        for _ in range(XRATE):
            if xq:
                kc, i = xq.pop(0)
                note(4 * kc, xpiece(kc, i))
        if s == tr_s0: tr_id = tr_issue()
        if s == tr_s1: tr_finish(tr_id)
        if gate_code and s >= 8:
            c = gate_code.pop(0)
            a(c)
            if "buffer_store" in c: vm.issue()
    assert not xq and not gate_code
    if stamp:
        a(f"""
        s_add_u32 s44, s32, {WS_DBG}
        s_addc_u32 s45, s33, 0
        s_mov_b32 s46, 0x100000
        s_mov_b32 s47, 0x00020000
        s_lshl_b32 s8, s2, 9
        v_lshlrev_b32 v3, 2, v1
        buffer_store_dword v100, v3, s[44:47], s8 offen
        buffer_store_dword v101, v3, s[44:47], s8 offen offset:256
        """)
    a("s_endpgm")

def emit_consumer(a, P, ST, D):
    a.label("K1_CONS")
    a.fence()
    lg = Counter("lgkmcnt", 15)
    ACC_A = 0
    ACC_A = 16; ACC_B = ACC_A + 112
    WF = 176; NW = 6
    XF = 200; NX = 3
    XA = 212
    WA = 220; WB = 221
    TMP = 222
    VST = 246; VSC = 247
    a(f"""
    v_and_b32 v3, 31, v1
    v_lshrrev_b32 v4, 5, v1
    s_lshl_b32 s8, s3, 5
    v_add_u32 v3, s8, v3
    v_lshrrev_b32 v5, 1, v3
    v_and_b32 v5, 7, v5
    v_lshlrev_b32 v3, 7, v3
    """)
    for j in range(4):
        a(f"""
        v_add_u32 v6, {2*j}, v4
        v_xor_b32 v6, v6, v5
        v_lshl_add_u32 v{XA+j}, v6, 4, v3
        v_add_u32 v{XA+4+j}, 0x10000, v{XA+j}
        """)
    a(f"""
    v_lshrrev_b32 v5, 2, v1
    v_and_b32 v5, 3, v5
    v_lshl_add_u32 v5, v4, 3, v5
    v_and_b32 v6, 3, v1
    v_lshlrev_b32 v6, 3, v6
    v_lshrrev_b32 v7, 4, v1
    v_and_b32 v7, 1, v7
    v_mul_u32_u24 v8, 448, v5
    v_mul_u32_u24 v9, 224, v7
    v_add3_u32 v{WA}, v8, v9, v6
    v_add_u32 v{WA}, {RING}, v{WA}
    v_mul_u32_u24 v8, 192, v5
    v_lshlrev_b32 v9, 5, v7
    v_add3_u32 v{WB}, v8, v9, v6
    v_add_u32 v{WB}, {RING}, v{WB}
    v_lshlrev_b32 v{VST}, 4, v1
    v_cmp_eq_u32 vcc, 0, v4
    v_mov_b32 v8, {f32hex(QSCALE)}
    v_cndmask_b32 v{VSC}, 0, v8, vcc
    v_and_b32 v3, 31, v1
    v_cmp_eq_u32 s[52:53], 28, v3
    s_mov_b32 s54, {f32hex(QSCALE)}
    s_mov_b32 s55, {f32hex(-1.4426950408889634)}
    s_lshl_b32 s8, s4, 2
    s_add_u32 s8, s8, s3
    """)
    a(f"""
    s_mul_i32 s56, s8, 144
    s_mul_i32 s9, s5, 7
    s_add_u32 s56, s56, s9
    s_lshl_b32 s56, s56, 10
    s_add_u32 s56, s56, {WS_H}
    s_add_u32 s57, s56, 4096
    s_lshl_b32 s9, s5, 6
    s_add_u32 s9, s9, s8
    s_lshl_b32 s58, s9, 11
    s_add_u32 s58, s58, {WS_Q}
    s_lshl_b32 s59, s9, 12
    s_add_u32 s59, s59, {WS_KV}
    s_waitcnt lgkmcnt(0)
    s_mov_b32 s44, s32
    s_mov_b32 s45, s33
    s_mov_b32 s46, {WS_END}
    s_mov_b32 s47, 0x00020000
    """)
    ops = []
    for s in range(NSA):
        for t in range(7): ops.append((s, s, "A", t, 0))
    for sb in range(NSB):
        for kk in range(2):
            for p in range(3): ops.append((NSA + sb, 2 * sb + kk, "B", p, kk))
    nops = len(ops)
    xslot_of = {}
    wread = {}
    state = {"next": 0, "stage": -1, "xn": 0}
    def issue_reads(j):
        s, ks, kind, t, kk = ops[j]
        if s != state["stage"]:
            a("s_barrier")
            state["stage"] = s
        key = (kind, ks)
        if key not in xslot_of:
            xs = state["xn"] % NX; state["xn"] += 1
            kc = ks >> 2
            areg = XA + (ks & 3) + (4 if kc >= 4 else 0)
            a(f"ds_read_b128 v[{XF+4*xs}:{XF+4*xs+3}], v{areg} offset:{(kc & 3)*16384}")
            xslot_of[key] = (xs, lg.issue())
        ws_ = j % NW
        slot = s % NSLOT
        for e in range(1 if P.get("exp_halfread") else 2):
            if kind == "A":
                off = slot * SLOT + e * 1792 + 32 * t; ar = WA
            else:
                off = slot * SLOT + kk * 3072 + e * 768 + 64 * t; ar = WB
            a(f"ds_read_b64_tr_b16 v[{WF+4*ws_+2*e}:{WF+4*ws_+2*e+1}], v{ar} offset:{off}")
            oid = lg.issue()
        wread[j] = (ws_, oid)
    fill = []
    for t in range(7):
        base = ACC_A + 16 * t
        tb = TMP + 12 * (t & 1)
        seq = []
        for i in range(8): seq.append(f"v_mul_f32 v{tb+i}, s55, v{base+i}")
        for i in range(8): seq.append(f"v_exp_f32 v{tb+i}, v{tb+i}")
        for i in range(8): seq.append(f"v_add_f32 v{tb+i}, 1.0, v{tb+i}")
        for i in range(8): seq.append(f"v_rcp_f32 v{tb+i}, v{tb+i}")
        for i in range(8): seq.append(f"v_mul_f32 v{tb+i}, v{tb+i}, v{base+8+i}")
        for i in range(4): seq.append(f"v_cvt_pk_bf16_f32 v{tb+8+i}, v{tb+2*i}, v{tb+2*i+1}")
        so = "s56" if t < 4 else "s57"
        seq.append(f"buffer_store_dwordx4 v[{tb+8}:{tb+11}], v{VST}, s[44:47], {so} offen offset:{(t&3)*1024}{ST}")
        fill += seq
    fm = P.get("fill_mode")
    if fm == "mulonly":
        fill = [f.replace("v_exp_f32", "v_mov_b32").replace("v_rcp_f32", "v_mov_b32") for f in fill]
    if fm == "nostore":
        fill = [f for f in fill if not f.startswith("buffer_store")]
    if fm == "transonly":
        fill = [f for f in fill if f.startswith(("v_exp", "v_rcp"))]
    if fm == "snop":
        fill = ["s_nop 0" for f in fill]
    if fm == "noacc":
        import re
        fill = [re.sub(r"v(\d+)$", lambda m: "v%d" % (int(m.group(1)) if int(m.group(1)) >= 128 else 2), f) for f in fill]
    def cost(s):
        return 8 if s.startswith(("v_exp", "v_rcp")) else 4
    total_fill = sum(cost(s) for s in fill)
    nB = nops - 7 * NSA
    per_gap = total_fill / (nB - 4)
    budget = 0.0
    for j in range(nops):
        while state["next"] < nops and state["next"] <= j + D:
            issue_reads(state["next"]); state["next"] += 1
        s, ks, kind, t, kk = ops[j]
        xs, xid = xslot_of[(kind, ks)]
        ws_, wid = wread[j]
        lg.wait_for(a, max(xid, wid))
        acc = (ACC_A if kind == "A" else ACC_B) + 16 * t
        c = "0" if ks == 0 else f"v[{acc}:{acc+15}]"
        wf = f"v[{WF+4*ws_}:{WF+4*ws_+3}]"; xf = f"v[{XF+4*xs}:{XF+4*xs+3}]"
        if kind == "B" and t == 2:
            a(f"v_mfma_f32_32x32x16_bf16 v[{acc}:{acc+15}], {xf}, {wf}, {c}")
        else:
            a(f"v_mfma_f32_32x32x16_bf16 v[{acc}:{acc+15}], {wf}, {xf}, {c}")
        if kind == "B" and j >= 7 * NSA + 2 and not P.get("exp_nofill"):
            budget += per_gap
            while fill and budget >= cost(fill[0]):
                budget -= cost(fill[0]); a(fill.pop(0))
    while fill: a(fill.pop(0))
    q = ACC_B; k = ACC_B + 16; v = ACC_B + 32
    tb = ACC_A
    for i in range(16):
        sc = "s54" if i < 12 else f"v{VSC}"
        a(f"v_mul_f32 v{q+i}, {sc}, v{q+i}")
    for i in range(8): a(f"v_cvt_pk_bf16_f32 v{tb+i}, v{q+2*i}, v{q+2*i+1}")
    a(f"buffer_store_dwordx4 v[{tb}:{tb+3}], v{VST}, s[44:47], s58 offen{ST}")
    a(f"buffer_store_dwordx4 v[{tb+4}:{tb+7}], v{VST}, s[44:47], s58 offen offset:1024{ST}")
    a(f"v_mov_b32 v{tb+24}, 0x3f803f80")
    a(f"v_cmp_eq_u32 vcc, 0, v{VSC}")
    for i in range(8): a(f"v_cvt_pk_bf16_f32 v{tb+8+i}, v{k+2*i}, v{k+2*i+1}")
    for i in (6, 7): a(f"v_cndmask_b32 v{tb+8+i}, v{tb+8+i}, v{tb+24}, vcc")
    a(f"buffer_store_dwordx4 v[{tb+8}:{tb+11}], v{VST}, s[44:47], s59 offen{ST}")
    a(f"buffer_store_dwordx4 v[{tb+12}:{tb+15}], v{VST}, s[44:47], s59 offen offset:1024{ST}")
    for i in range(8): a(f"v_cvt_pk_bf16_f32 v{tb+16+i}, v{v+2*i}, v{v+2*i+1}")
    for i in range(8): a(f"v_cndmask_b32 v{tb+16+i}, v{tb+16+i}, v{tb+24}, s[52:53]")
    a(f"buffer_store_dwordx4 v[{tb+16}:{tb+19}], v{VST}, s[44:47], s59 offen offset:2048{ST}")
    a(f"buffer_store_dwordx4 v[{tb+20}:{tb+23}], v{VST}, s[44:47], s59 offen offset:3072{ST}")
    if P.get("stamp"):
        a(f"""
        s_memtime s[66:67]
        s_waitcnt vmcnt(0) lgkmcnt(0)
        s_memtime s[68:69]
        s_memrealtime s[70:71]
        s_waitcnt lgkmcnt(0)
        v_mov_b32 v4, s66
        v_mov_b32 v5, s68
        v_mov_b32 v6, s70
        v_mov_b32 v7, s62
        s_add_u32 s44, s32, {WS_DBG + (1<<19)}
        s_addc_u32 s45, s33, 0
        s_mov_b32 s46, 0x80000
        s_lshl_b32 s8, s2, 6
        s_lshl_b32 s9, s3, 4
        s_add_u32 s8, s8, s9
        v_mov_b32 v3, 0
        buffer_store_dwordx4 v[4:7], v3, s[44:47], s8 offen
        """)
```

```python
import struct
from asmlib import Asm, Counter
from layout import *

def f32hex(x):
    return "0x%08x" % struct.unpack("<I", struct.pack("<f", x))[0]

OREG = 0
LREG = 8 * 14336
GREG = LREG + 8192
FLAG = GREG + 32768
def k2_lds(P): return FLAG + 256

Q0 = 2; O0 = 34; S0 = 98; KB = 130; VB = 146; T0 = 162

def emit_k2(a, P):
    a.raw(".p2align 8")
    a.raw(".globl k2_kernel")
    a.raw(".type k2_kernel,@function")
    a.label("k2_kernel")
    a.fence()
    a("""
    s_cmp_ge_u32 s2, 256
    s_cbranch_scc1 K2_END
    s_load_dwordx2 s[32:33], s[0:1], 80
    v_lshrrev_b32 v2, 6, v0
    v_and_b32 v0, 63, v0
    v_lshlrev_b32 v1, 4, v0
    v_readfirstlane_b32 s3, v2
    s_and_b32 s6, s2, 7
    s_lshr_b32 s7, s2, 3
    """)
    a(f"""
    s_mov_b32 s34, {WS_END}
    s_mov_b32 s35, 0x00020000
    s_cmp_ge_u32 s3, 8
    s_cbranch_scc1 K2_GEMM
    """)
    emit_attn(a, P)
    emit_gemm(a, P)
    a.label("K2_END")
    a("s_endpgm")

def step_order(P):
    order = [(kt, qt) for kt in range(8) for qt in range(4)]
    if P.get("k2_tail", 1):
        order = order[:24] + [(6, 0), (6, 1), (7, 0), (7, 1), (6, 2), (7, 2), (6, 3), (7, 3)]
    return order

def emit_attn(a, P):
    vm = Counter("vmcnt", 63)
    ST = P.get("k2_store", "")
    a(f"""
    s_lshl_b32 s4, s6, 1
    s_and_b32 s8, s7, 1
    s_add_u32 s4, s4, s8
    s_lshr_b32 s5, s7, 1
    s_lshl_b32 s8, s4, 6
    s_lshl_b32 s9, s5, 2
    s_add_u32 s9, s9, s8
    s_lshl_b32 s10, s9, 11
    s_add_u32 s11, s10, 4096
    s_lshl_b32 s9, s3, 3
    s_add_u32 s9, s9, s8
    s_lshl_b32 s12, s9, 12
    s_add_u32 s12, s12, {WS_KV}
    s_mov_b32 s14, 0
    s_waitcnt lgkmcnt(0)
    """)
    if P.get("k2_aprio"): a(f"s_setprio {P['k2_aprio']}")
    ids = {}
    def ldq(qt):
        so = "s10" if qt < 2 else "s11"
        for t in range(2):
            a(f"buffer_load_dwordx4 v[{Q0+8*qt+4*t}:{Q0+8*qt+4*t+3}], v1, s[32:35], {so} offen offset:{(qt&1)*2048+t*1024}")
            ids[("q", qt)] = vm.issue()
    def ldkv(kind, kt):
        base = (KB if kind == "k" else VB) + 8 * (kt & 1)
        a(f"s_add_u32 s13, s12, {kt*4096}")
        for t in range(2):
            a(f"buffer_load_dwordx4 v[{base+4*t}:{base+4*t+3}], v1, s[32:35], s13 offen offset:{(0 if kind=='k' else 2048)+t*1024}")
            ids[(kind, kt)] = vm.issue()
    ldq(0); ldkv("k", 0); ldq(1); ldq(2); ldq(3)
    a("s_barrier")
    a.label("K2_RUN")
    ldkv("v", 0); ldkv("k", 1); ldkv("v", 1)
    order = step_order(P)
    n = len(order)
    lastk = {}; lastv = {}; lastq = {}; firstq = {}
    for i, (kt, qt) in enumerate(order):
        lastk[kt] = i; lastq[qt] = i
        firstq.setdefault(qt, i)
    def qk(i):
        kt, qt = order[i]
        S = S0 + 16 * (i & 1); K = KB + 8 * (kt & 1); Q = Q0 + 8 * qt
        return [("w", max(ids[("k", kt)], ids[("q", qt)])),
                f"v_mfma_f32_32x32x16_bf16 v[{S}:{S+15}], v[{K}:{K+3}], v[{Q}:{Q+3}], 0",
                f"v_mfma_f32_32x32x16_bf16 v[{S}:{S+15}], v[{K+4}:{K+7}], v[{Q+4}:{Q+7}], v[{S}:{S+15}]"]
    def pv(i):
        kt, qt = order[i]
        S = S0 + 16 * (i & 1); V = VB + 8 * (kt & 1); O = O0 + 16 * qt
        c = "0" if firstq[qt] == i else f"v[{O}:{O+15}]"
        return [("w", ids[("v", kt)]),
                f"v_mfma_f32_32x32x16_bf16 v[{O}:{O+15}], v[{V}:{V+3}], v[{S}:{S+3}], {c}",
                f"v_mfma_f32_32x32x16_bf16 v[{O}:{O+15}], v[{V+4}:{V+7}], v[{S+4}:{S+7}], v[{O}:{O+15}]"]
    def emit(x):
        if isinstance(x, tuple): vm.wait_for(a, x[1])
        else: a(x)
    wl = {"n": 0}
    def owrite(qt):
        O = O0 + 16 * qt
        for t in range(2):
            r = 2 * qt + t
            lab = f"K2_SKW{wl['n']}"; wl["n"] += 1
            hi = 0x10000 if r * 14336 + 1024 >= 65536 else 0
            a(f"""
            s_sub_u32 s15, s3, {r+1}
            s_and_b32 s15, s15, 7
            s_lshl_b32 s16, s15, 11
            """)
            if hi: a("s_add_u32 s16, s16, 0x10000")
            a(f"""
            v_add_u32 v{T0}, s16, v1
            s_cmp_eq_u32 s15, 7
            s_cbranch_scc1 {lab}
            """)
            a.opt(1)
            a(f"""
            ds_write_b128 v{T0}, v[{O+8*t}:{O+8*t+3}] offset:{r*14336 - hi}
            ds_write_b128 v{T0}, v[{O+8*t+4}:{O+8*t+7}] offset:{r*14336 + 1024 - hi}
            """)
            a.opt(0)
            a.label(lab)
        a(f"ds_write_b32 v{T0+1}, v{O+12} offset:{qt*2048}")
    a(f"""
    s_lshl_b32 s15, s3, 2
    s_add_u32 s15, s15, {LREG}
    v_lshl_add_u32 v{T0+1}, v0, 5, s15
    """)
    for x in qk(0): emit(x)
    pend_w = []
    for i in range(n + 1):
        if i < n:
            S = S0 + 16 * (i & 1)
            ex = [f"v_exp_f32 v{S+j}, v{S+j}" for j in range(16)]
            cv = [f"v_cvt_pk_bf16_f32 v{S+j}, v{S+2*j}, v{S+2*j+1}" for j in range(8)]
        else:
            ex = []; cv = []
        p = pv(i - 1) if i >= 1 else [None, None, None]
        q = qk(i + 1) if i + 1 < n else [None, None, None]
        seq = [p[0], p[1]] + ex[0:3] + [p[2]] + ex[3:6] + cv[0:1] + [q[0], q[1]] + ex[6:9] + cv[1:3] + [q[2]] + ex[9:16] + cv[3:8]
        post = []
        for x in seq:
            if x is None: continue
            emit(x)
            if x is p[2]:
                kt, qt = order[i - 1]
                if lastk[kt] == i - 1 and kt + 2 < 8: ldkv("v", kt + 2)
                if pend_w:
                    owrite(pend_w.pop(0))
                if lastq[qt] == i - 1: pend_w.append(qt)
            if x is q[2]:
                kt, qt = order[i + 1]
                if lastk[kt] == i + 1 and kt + 2 < 8: ldkv("k", kt + 2)
    while pend_w: owrite(pend_w.pop(0))
    for r in range(8):
        a(f"s_cmp_lg_u32 s3, {r}\ns_cbranch_scc1 K2_OWN{r}")
        a.opt(1)
        for j in range(8): a(f"v_mov_b32 v{S0+j}, v{O0+8*r+j}")
        a.opt(0)
        a.label(f"K2_OWN{r}")
    a(f"""
    s_mul_i32 s15, s3, 14336
    v_add_u32 v{T0}, s15, v1
    s_lshr_b32 s16, s3, 1
    s_lshl_b32 s17, s16, 11
    s_add_u32 s17, s17, {LREG + 1024}
    v_and_b32 v{T0+2}, 31, v0
    v_lshl_add_u32 v{T0+2}, v{T0+2}, 5, s17
    s_waitcnt lgkmcnt(0)
    s_barrier
    """)
    lg = Counter("lgkmcnt", 15)
    a(f"ds_read_b128 v[{S0+8}:{S0+11}], v{T0+2}"); lg.issue()
    a(f"ds_read_b128 v[{S0+12}:{S0+15}], v{T0+2} offset:16"); lid = lg.issue()
    rid = []
    for s in range(6):
        for u in range(2):
            a(f"ds_read_b128 v[{O0+8*s+4*u}:{O0+8*s+4*u+3}], v{T0} offset:{s*2048+u*1024}")
            x = lg.issue()
        rid.append(x)
    lg.wait_for(a, lid)
    s = 6
    for u in range(2):
        a(f"ds_read_b128 v[{O0+8*s+4*u}:{O0+8*s+4*u+3}], v{T0} offset:{s*2048+u*1024}")
        x = lg.issue()
    rid.append(x)
    L = S0 + 8
    a(f"""
    v_add_f32 v{L}, v{L}, v{L+1}
    v_add_f32 v{L+2}, v{L+2}, v{L+3}
    v_add_f32 v{L+4}, v{L+4}, v{L+5}
    v_add_f32 v{L+6}, v{L+6}, v{L+7}
    v_add_f32 v{L}, v{L}, v{L+2}
    v_add_f32 v{L+4}, v{L+4}, v{L+6}
    v_add_f32 v{L}, v{L}, v{L+4}
    v_rcp_f32 v{L+1}, v{L}
    """)
    for s in range(7):
        lg.wait_for(a, rid[s])
        for j in range(8): a(f"v_add_f32 v{S0+j}, v{S0+j}, v{O0+8*s+j}")
    a(f"""
    s_and_b32 s15, s3, 1
    s_lshl_b32 s15, s15, 5
    s_sub_u32 s15, 64, s15
    v_cmp_gt_u32 vcc, s15, v0
    """)
    for j in range(8): a(f"v_mul_f32 v{S0+j}, v{S0+j}, v{L+1}")
    for j in range(4, 8): a(f"v_cndmask_b32 v{S0+j}, 0, v{S0+j}, vcc")
    a(f"""
    v_max3_f32 v{L+2}, |v{S0}|, |v{S0+1}|, |v{S0+2}|
    v_max3_f32 v{L+3}, |v{S0+3}|, |v{S0+4}|, |v{S0+5}|
    v_add_f32 v{L+4}, v{S0}, v{S0+1}
    v_add_f32 v{L+5}, v{S0+2}, v{S0+3}
    v_add_f32 v{L+6}, v{S0+4}, v{S0+5}
    v_add_f32 v{L+7}, v{S0+6}, v{S0+7}
    v_max3_f32 v{L+2}, v{L+2}, |v{S0+6}|, |v{S0+7}|
    v_add_f32 v{L+4}, v{L+4}, v{L+5}
    v_add_f32 v{L+6}, v{L+6}, v{L+7}
    v_max_f32 v{L+2}, v{L+2}, v{L+3}
    v_add_f32 v{L+4}, v{L+4}, v{L+6}
    s_mov_b32 s26, {f32hex(2.0**-30)}
    s_mov_b32 s27, {f32hex(2.0**30)}
    s_mov_b32 s28, {f32hex(2.0**120)}
    v_cmp_le_f32 s[18:19], s26, v{L}
    v_cmp_ge_f32 s[20:21], s27, v{L}
    v_cmp_ge_f32 s[22:23], s28, v{L+2}
    v_cmp_o_f32 s[24:25], v{L+4}, v{L+4}
    """)
    for j in range(4): a(f"v_cvt_pk_bf16_f32 v{S0+j}, v{S0+2*j}, v{S0+2*j+1}")
    a(f"""
    s_and_b64 s[18:19], s[18:19], s[20:21]
    s_and_b64 s[22:23], s[22:23], s[24:25]
    s_and_b64 s[18:19], s[18:19], s[22:23]
    s_lshl_b32 s15, s5, 2
    s_add_u32 s15, s15, s16
    s_mul_i32 s15, s15, {HSTR}
    s_lshl_b32 s16, s4, 1
    s_and_b32 s17, s3, 1
    s_add_u32 s16, s16, s17
    s_lshl_b32 s16, s16, 10
    s_add_u32 s15, s15, s16
    s_add_u32 s15, s15, {WS_H + 112*1024}
    buffer_store_dwordx4 v[{S0}:{S0+3}], v1, s[32:35], s15 offen{ST}
    s_cmp_lg_u32 s14, 0
    s_cbranch_scc1 K2_END
    s_not_b64 s[18:19], s[18:19]
    s_cmp_eq_u64 s[18:19], 0
    s_cbranch_scc1 K2_OKW
    v_mov_b32 v{T0}, {FLAG + 64}
    v_mov_b32 v{T0+2}, 1
    ds_write_b32 v{T0}, v{T0+2}
    """)
    a.label("K2_OKW")
    a(f"""
    v_mov_b32 v{T0}, {FLAG + 64}
    s_waitcnt lgkmcnt(0)
    s_barrier
    ds_read_b32 v{T0+2}, v{T0}
    s_waitcnt lgkmcnt(0)
    v_readfirstlane_b32 s15, v{T0+2}
    s_cmp_eq_u32 s15, 0
    s_cbranch_scc1 K2_END
    """)
    a.fence()
    M = O0
    a("s_waitcnt vmcnt(0)\ns_mov_b32 s14, 1\ns_mov_b32 s13, s12\ns_mov_b32 s15, 8")
    for qt in range(4): a(f"v_mov_b32 v{M+qt}, 0xff800000")
    a.label("K2_MXL")
    a.fence()
    a(f"""
    buffer_load_dwordx4 v[{KB}:{KB+3}], v1, s[32:35], s13 offen
    buffer_load_dwordx4 v[{KB+4}:{KB+7}], v1, s[32:35], s13 offen offset:1024
    s_waitcnt vmcnt(0)
    """)
    for qt in range(4):
        Q = Q0 + 8 * qt; S = S0
        a(f"v_mfma_f32_32x32x16_bf16 v[{S}:{S+15}], v[{KB}:{KB+3}], v[{Q}:{Q+3}], 0")
        a(f"v_mfma_f32_32x32x16_bf16 v[{S}:{S+15}], v[{KB+4}:{KB+7}], v[{Q+4}:{Q+7}], v[{S}:{S+15}]")
        for j in range(8): a(f"v_max3_f32 v{M+qt}, v{M+qt}, v{S+2*j}, v{S+2*j+1}")
    a("""
    s_add_u32 s13, s13, 4096
    s_sub_u32 s15, s15, 1
    s_cmp_lg_u32 s15, 0
    s_nop 7
    s_cbranch_scc1 K2_MXL
    """)
    for qt in range(4): a(f"ds_write_b32 v{T0+1}, v{M+qt} offset:{qt*2048}")
    a(f"""
    v_and_b32 v{T0+2}, 31, v0
    v_lshlrev_b32 v{T0+2}, 5, v{T0+2}
    v_add_u32 v{T0+2}, {LREG}, v{T0+2}
    v_cmp_le_u32 vcc, 32, v0
    s_waitcnt lgkmcnt(0)
    s_barrier
    """)
    for qt in range(4):
        S = S0
        for u in range(4):
            a(f"ds_read_b128 v[{S+4*u}:{S+4*u+3}], v{T0+2} offset:{qt*2048 + (u>>1)*1024 + (u&1)*16}")
        a("s_waitcnt lgkmcnt(0)")
        m = M + 4
        a(f"v_max_f32 v{m}, v{S}, v{S+1}")
        for j in range(1, 8): a(f"v_max3_f32 v{m}, v{m}, v{S+2*j}, v{S+2*j+1}")
        Q = Q0 + 8 * qt
        a(f"""
        v_mul_f32 v{m}, -1.0, v{m}
        v_and_b32 v{m+1}, 0xffff0000, v{m}
        v_sub_f32 v{m}, v{m}, v{m+1}
        v_and_b32 v{m+2}, 0xffff0000, v{m}
        v_sub_f32 v{m}, v{m}, v{m+2}
        v_lshrrev_b32 v{m+1}, 16, v{m+1}
        v_or_b32 v{m+1}, v{m+1}, v{m+2}
        v_lshrrev_b32 v{m}, 16, v{m}
        v_cndmask_b32 v{Q+6}, v{Q+6}, v{m+1}, vcc
        v_cndmask_b32 v{Q+7}, v{Q+7}, v{m}, vcc
        """)
    a(f"""
    buffer_load_dwordx4 v[{KB}:{KB+3}], v1, s[32:35], s12 offen
    buffer_load_dwordx4 v[{KB+4}:{KB+7}], v1, s[32:35], s12 offen offset:1024
    s_waitcnt vmcnt(0)
    s_barrier
    s_branch K2_RUN
    """)

def emit_gemm(a, P):
    KS2 = P.get("ks2", 96)
    assert KS2 % 4 == 0
    KQ = KS2 // 4
    DEP = P.get("k2_gdepth", 6)
    ST = P.get("k2_bstore", "")
    a.label("K2_GEMM")
    a.fence()
    vm = Counter("vmcnt", 63)
    ACC = 2; BUF = 66
    TA = 162
    a(f"""
    s_sub_u32 s3, s3, 8
    s_cmp_lg_u32 s3, 0
    s_cbranch_scc1 K2_G1
    v_lshlrev_b32 v{TA}, 2, v0
    v_mov_b32 v{TA+1}, 0
    ds_write_b32 v{TA}, v{TA+1} offset:{FLAG & 0xffff}
    """.replace(f"v_lshlrev_b32 v{TA}, 2, v0", f"v_lshlrev_b32 v{TA}, 2, v0\n v_add_u32 v{TA}, {FLAG & ~0xffff}, v{TA}"))
    a.label("K2_G1")
    if KS2 == 0:
        a("s_waitcnt lgkmcnt(0)\ns_barrier\ns_endpgm")
        return
    a(f"""
    s_mul_i32 s8, s7, 37
    s_lshr_b32 s8, s8, 8
    s_mul_i32 s9, s8, 7
    s_sub_u32 s9, s7, s9
    s_lshl_b32 s10, s6, 2
    s_add_u32 s8, s8, s10
    s_and_b32 s10, s3, 1
    s_lshr_b32 s11, s3, 1
    s_mul_i32 s12, s3, {KQ*1024}
    s_lshl_b32 s13, s9, 1
    s_add_u32 s14, s13, s10
    s_xor_b32 s15, s14, 1
    s_mul_i32 s14, s14, {HSTR}
    s_mul_i32 s15, s15, {HSTR}
    s_add_u32 s14, s14, s12
    s_add_u32 s15, s15, s12
    s_add_u32 s14, s14, {WS_W2}
    s_add_u32 s15, s15, {WS_W2}
    s_lshl_b32 s13, s8, 1
    s_add_u32 s16, s13, s11
    s_xor_b32 s17, s16, 1
    s_mul_i32 s16, s16, {HSTR}
    s_mul_i32 s17, s17, {HSTR}
    s_add_u32 s16, s16, s12
    s_add_u32 s17, s17, s12
    s_add_u32 s16, s16, {WS_H}
    s_add_u32 s17, s17, {WS_H}
    s_waitcnt lgkmcnt(0)
    s_cmp_ge_u32 s7, 28
    s_cbranch_scc0 K2_G2
    s_barrier
    s_endpgm
    """)
    a.label("K2_G2")
    if P.get("k2_gprio"): a(f"s_setprio {P['k2_gprio']}")
    ids = {}
    def ld(k):
        b = BUF + 16 * (k % DEP)
        if k and k % 4 == 0:
            for s in (14, 15, 16, 17): a(f"s_add_u32 s{s}, s{s}, 4096")
        for i, s in enumerate((14, 16, 15, 17)):
            a(f"buffer_load_dwordx4 v[{b+4*i}:{b+4*i+3}], v1, s[32:35], s{s} offen offset:{(k&3)*1024}")
            ids[(k, i)] = vm.issue()
    pre = P.get("k2_gpre", 2)
    for k in range(min(pre, KQ)): ld(k)
    a("s_barrier")
    for k in range(pre, min(DEP, KQ)): ld(k)
    for k in range(KQ):
        b = BUF + 16 * (k % DEP)
        A = [f"v[{b}:{b+3}]", f"v[{b+8}:{b+11}]"]; B = [f"v[{b+4}:{b+7}]", f"v[{b+12}:{b+15}]"]
        for (x, y, need) in ((0, 0, 1), (1, 0, 2), (0, 1, 3), (1, 1, 3)):
            vm.wait_for(a, ids[(k, need)])
            acc = ACC + 16 * (2 * x + y)
            c = "0" if k == 0 else f"v[{acc}:{acc+15}]"
            a(f"v_mfma_f32_32x32x16_bf16 v[{acc}:{acc+15}], {A[x]}, {B[y]}, {c}")
        if k + DEP < KQ: ld(k + DEP)
    a(f"""
    s_lshl_b32 s18, s3, 13
    s_add_u32 s18, s18, {GREG}
    v_add_u32 v{TA}, s18, v1
    s_xor_b32 s19, s3, 1
    s_lshl_b32 s19, s19, 13
    s_add_u32 s19, s19, {GREG}
    v_add_u32 v{TA+1}, s19, v1
    s_xor_b32 s19, s3, 3
    s_lshl_b32 s19, s19, 13
    s_add_u32 s19, s19, {GREG}
    v_add_u32 v{TA+2}, s19, v1
    s_lshl_b32 s18, s3, 2
    s_add_u32 s18, s18, {FLAG}
    v_mov_b32 v{TA+3}, s18
    v_xor_b32 v{TA+4}, 4, v{TA+3}
    v_mov_b32 v{TA+5}, 1
    """)
    for r in range(8): a(f"ds_write_b128 v{TA}, v[{ACC+32+4*r}:{ACC+35+4*r}] offset:{r*1024}")
    a(f"s_waitcnt lgkmcnt(0)\nds_write_b32 v{TA+3}, v{TA+5}")
    def spin(lab, areg, off):
        a.label(lab)
        a(f"""
        ds_read_b32 v{BUF}, v{areg} offset:{off}
        s_waitcnt lgkmcnt(0)
        v_readfirstlane_b32 s18, v{BUF}
        s_cmp_lg_u32 s18, 0
        s_cbranch_scc1 {lab}D
        s_sleep 1
        s_branch {lab}
        """)
        a.label(lab + "D")
    spin("K2_SP1", TA + 4, 0)
    for r in range(8): a(f"ds_read_b128 v[{BUF+4*r}:{BUF+4*r+3}], v{TA+1} offset:{r*1024}")
    a("s_waitcnt lgkmcnt(0)")
    for j in range(16, 32): a(f"v_add_f32 v{ACC+j}, v{ACC+j}, v{BUF+j}")
    for r in range(4): a(f"ds_write_b128 v{TA+1}, v[{ACC+16+4*r}:{ACC+19+4*r}] offset:{r*1024}")
    a(f"v_xor_b32 v{TA+4}, 8, v{TA+3}")
    for j in range(16): a(f"v_add_f32 v{ACC+j}, v{ACC+j}, v{BUF+j}")
    a(f"s_waitcnt lgkmcnt(0)\nds_write_b32 v{TA+3}, v{TA+5} offset:16")
    spin("K2_SP2", TA + 4, 16)
    for r in range(4): a(f"ds_read_b128 v[{BUF+4*r}:{BUF+4*r+3}], v{TA+2} offset:{r*1024}")
    a(f"""
    s_mul_i32 s18, s8, 7
    s_add_u32 s18, s18, s9
    s_lshl_b32 s18, s18, 2
    s_add_u32 s18, s18, s3
    s_lshl_b32 s18, s18, 12
    s_add_u32 s18, s18, {WS_B}
    s_waitcnt lgkmcnt(0)
    """)
    for j in range(16): a(f"v_add_f32 v{ACC+j}, v{ACC+j}, v{BUF+j}")
    for r in range(4): a(f"buffer_store_dwordx4 v[{ACC+4*r}:{ACC+4*r+3}], v1, s[32:35], s18 offen offset:{r*1024}{ST}")
    a("s_endpgm")
```

```python
from asmlib import Asm, Counter
from layout import *

def k3_cfg(P):
    KS2 = P.get("ks2", 96)
    NK = 144 - KS2
    CH = P.get("k3_chunk", 4)
    assert NK % CH == 0
    NSL = min(NK // CH, 40 // CH)
    return KS2, NK, CH, NSL
def k3_lds(P):
    KS2, NK, CH, NSL = k3_cfg(P)
    return NSL * CH * 4096

def emit_k3(a, P):
    KS2, NK, CH, NSL = k3_cfg(P)
    NCH = NK // CH
    a.raw(".p2align 8")
    a.raw(".globl k3_kernel")
    a.raw(".type k3_kernel,@function")
    a.label("k3_kernel")
    a.fence()
    vm = Counter("vmcnt", 63)
    lg = Counter("lgkmcnt", 15)
    ACA = 16; ACB = 32; FR = 48
    NF = 2 * CH
    a(f"""
    s_cmp_ge_u32 s2, 224
    s_cbranch_scc1 K3_END
    s_load_dwordx2 s[32:33], s[0:1], 80
    s_load_dwordx2 s[36:37], s[0:1], 64
    v_lshrrev_b32 v2, 6, v0
    v_and_b32 v0, 63, v0
    v_lshlrev_b32 v1, 4, v0
    v_readfirstlane_b32 s3, v2
    s_and_b32 s6, s2, 7
    s_lshr_b32 s7, s2, 3
    s_mov_b32 s34, {WS_END}
    s_mov_b32 s35, 0x00020000
    s_mov_b32 s38, {2048*896}
    s_mov_b32 s39, 0x00020000
    s_mul_i32 s8, s7, 37
    s_lshr_b32 s8, s8, 8
    s_mul_i32 s9, s8, 7
    s_sub_u32 s9, s7, s9
    s_lshl_b32 s10, s6, 2
    s_add_u32 s8, s8, s10
    s_and_b32 s10, s3, 1
    s_lshr_b32 s11, s3, 1
    """)
    a(f"""
    s_lshl_b32 s12, s9, 1
    s_add_u32 s12, s12, s10
    s_mul_i32 s12, s12, {HSTR}
    s_add_u32 s12, s12, {WS_W2 + KS2*1024}
    s_lshl_b32 s13, s8, 1
    s_add_u32 s13, s13, s10
    s_mul_i32 s13, s13, {HSTR}
    s_add_u32 s13, s13, {WS_H + KS2*1024}
    s_cmp_eq_u32 s11, 0
    s_cselect_b32 s12, s12, s13
    s_lshl_b32 s14, s3, 10
    s_lshl_b32 s15, s10, 10
    v_add_u32 v2, s15, v1
    s_lshl_b32 s15, s11, 10
    s_add_u32 s15, s15, 2048
    v_add_u32 v3, s15, v1
    v_add_u32 v4, 0x10000, v2
    v_add_u32 v5, 0x10000, v3
    v_add_u32 v6, 0x20000, v2
    v_add_u32 v7, 0x20000, v3
    s_mul_i32 s18, s8, 7
    s_add_u32 s18, s18, s9
    s_lshl_b32 s18, s18, 2
    s_add_u32 s18, s18, s3
    s_lshl_b32 s18, s18, 12
    s_add_u32 s18, s18, {WS_B}
    s_lshl_b32 s19, s8, 6
    s_lshl_b32 s20, s11, 5
    s_add_u32 s19, s19, s20
    v_and_b32 v8, 31, v0
    v_add_u32 v8, s19, v8
    v_lshlrev_b32 v9, 2, v8
    v_mul_u32_u24 v8, 896, v8
    v_lshrrev_b32 v10, 5, v0
    v_lshl_add_u32 v8, v10, 4, v8
    s_lshl_b32 s19, s9, 7
    s_lshl_b32 s20, s10, 6
    s_add_u32 s19, s19, s20
    s_mov_b32 s20, {WS_G}
    s_waitcnt lgkmcnt(0)
    """)
    cid = {}
    def dma(c):
        for i in range(CH):
            k = c * CH + i
            if k and k % 4 == 0: a("s_add_u32 s12, s12, 4096")
            a(f"s_add_u32 m0, s14, {((c % NSL) * CH + i) * 4096 - (k&3)*1024}")
            a(f"buffer_load_dwordx4 v1, s[32:35], s12 offen offset:{(k&3)*1024} lds")
            cid[c] = vm.issue()
    first = min(NSL, NCH)
    for c in range(first):
        dma(c)
        if c == P.get("k3_bat", 1):
            if KS2 > 0:
                for r in range(4):
                    a(f"buffer_load_dwordx4 v[{ACB+4*r}:{ACB+4*r+3}], v1, s[32:35], s18 offen offset:{r*1024}")
                    vm.issue()
            a("buffer_load_dword v11, v9, s[32:35], s20 offen")
            bid = vm.issue()
    rd = {}
    def reads(c):
        vm.wait_for(a, cid[c])
        a("s_barrier")
        for i in range(CH):
            off = ((c % NSL) * CH + i) * 4096
            seg = off >> 16
            f = FR + 8 * ((c * CH + i) % NF)
            a(f"ds_read_b128 v[{f}:{f+3}], v{2+2*seg} offset:{off & 0xffff}"); lg.issue()
            a(f"ds_read_b128 v[{f+4}:{f+7}], v{3+2*seg} offset:{off & 0xffff}")
            rd[c * CH + i] = lg.issue()
    reads(0)
    for c in range(NCH):
        if c + 1 < NCH: reads(c + 1)
        if c >= 1 and c - 1 + NSL < NCH and c + 1 < NCH: dma(c - 1 + NSL)
        for i in range(CH):
            k = c * CH + i
            kk = KS2 + k
            f = FR + 8 * (k % NF)
            lg.wait_for(a, rd[k])
            if kk < 112:
                acc = ACB
                if k == 0 and KS2 > 0: vm.wait_for(a, bid)
                cc = "0" if (k == 0 and KS2 == 0) else f"v[{acc}:{acc+15}]"
            else:
                acc = ACA
                cc = "0" if kk == 112 else f"v[{acc}:{acc+15}]"
            a(f"v_mfma_f32_32x32x16_bf16 v[{acc}:{acc+15}], v[{f}:{f+3}], v[{f+4}:{f+7}], {cc}")
    vm.wait_for(a, bid)
    for j in range(16): a(f"v_sub_f32 v{ACA+j}, v{ACA+j}, v{ACB+j}")
    for j in range(16): a(f"v_fma_f32 v{ACA+j}, v11, v{ACA+j}, v{ACB+j}")
    for j in range(8): a(f"v_cvt_pk_bf16_f32 v{FR+j}, v{ACA+2*j}, v{ACA+2*j+1}")
    for b in (0, 4):
        a(f"v_permlane32_swap_b32 v{FR+b}, v{FR+b+2}")
        a(f"v_permlane32_swap_b32 v{FR+b+1}, v{FR+b+3}")
    ST = P.get("k3_store", "")
    a(f"buffer_store_dwordx4 v[{FR}:{FR+3}], v8, s[36:39], s19 offen{ST}")
    a(f"buffer_store_dwordx4 v[{FR+4}:{FR+7}], v8, s[36:39], s19 offen offset:32{ST}")
    a.label("K3_END")
    a("s_endpgm")
```

```python
import sys, json
sys.path.insert(0, "gen")
from asmlib import Asm
import k1

HEADER = """; gated_mix__softmax_full_mha__glu_gated_glu__prompt : generated CDNA4 assembly (gen/gen.py)
"""

def desc(name, vgpr, sgpr=96):
    acc = (vgpr + 3) // 4 * 4
    return f""".amdhsa_kernel {name}
  .amdhsa_next_free_vgpr {vgpr}
  .amdhsa_next_free_sgpr {sgpr}
  .amdhsa_accum_offset {acc}
  .amdhsa_group_segment_fixed_size 0
  .amdhsa_kernarg_size 88
  .amdhsa_user_sgpr_count 2
  .amdhsa_user_sgpr_kernarg_segment_ptr 1
  .amdhsa_system_sgpr_workgroup_id_x 1
.end_amdhsa_kernel
"""

def build(P):
    kernels = P.get("kernels", ["k1", "k2", "k3"])
    a = Asm()
    launches = []
    descs = []
    if "k1" in kernels:
        k1.emit_k1(a, P)
        launches.append(f"; @launch kernel=k1_kernel grid=(256,1,1) block=(512,1,1) lds={k1.K1_LDS}")
        descs.append(desc("k1_kernel", 256))
    if "k2" in kernels:
        import k2
        k2.emit_k2(a, P)
        launches.append(f"; @launch kernel=k2_kernel grid=(256,1,1) block=(768,1,1) lds={k2.k2_lds(P)}")
        descs.append(desc("k2_kernel", 168))
    if "k3" in kernels:
        import k3
        k3.emit_k3(a, P)
        launches.append(f"; @launch kernel=k3_kernel grid=(224,1,1) block=(256,1,1) lds={k3.k3_lds(P)}")
        descs.append(desc("k3_kernel", 128))
    body = a.render()
    s = HEADER + "\n".join(launches) + "\n"
    s += '.amdgcn_target "amdgcn-amd-amdhsa--gfx950"\n.text\n' + body
    s += '.section .rodata,"a"\n'
    for d in descs:
        s += ".p2align 6\n" + d
    return s, a.nops

if __name__ == "__main__":
    out = sys.argv[1]
    P = json.loads(sys.argv[2]) if len(sys.argv) > 2 else {}
    s, nn = build(P)
    open(out, "w").write(s)
    print("wrote", out, len(s), "bytes; auto nops:", nn)
```

```python
import struct
from asmlib import Asm, Counter
from layout import *

def f32hex(x):
    return "0x%08x" % struct.unpack("<I", struct.pack("<f", x))[0]

OREG = 0
LREG = 8 * 14336
GREG = LREG + 8192
FLAG = GREG + 32768
def k2_lds(P): return FLAG + 256

Q0 = 2; O0 = 34; S0 = 98; KB = 130; VB = 146; T0 = 162

def stamp(a, P, idx):
    if P.get("stamp2"):
        a(f"s_memtime s[60:61]\ns_waitcnt lgkmcnt(0)\nv_writelane_b32 v167, s60, {idx}")
def stamp_out(a, P):
    if P.get("stamp2"):
        a(f"""
        s_memrealtime s[60:61]
        s_waitcnt lgkmcnt(0)
        v_writelane_b32 v167, s60, 61
        v_writelane_b32 v167, s62, 62
        v_writelane_b32 v167, s64, 63
        s_add_u32 s44, s32, {WS_DBG}
        s_addc_u32 s45, s33, 0
        s_mov_b32 s46, 0x100000
        s_mov_b32 s47, 0x00020000
        s_mul_i32 s60, s2, 12
        s_add_u32 s60, s60, s66
        s_lshl_b32 s60, s60, 8
        v_lshlrev_b32 v166, 2, v0
        buffer_store_dword v167, v166, s[44:47], s60 offen
        """)

def emit_k2(a, P):
    a.raw(".p2align 8")
    a.raw(".globl k2_kernel")
    a.raw(".type k2_kernel,@function")
    a.label("k2_kernel")
    a.fence()
    a("""
    s_cmp_ge_u32 s2, 256
    s_cbranch_scc1 K2_END
    """)
    if P.get("stamp2"): a("s_memtime s[62:63]\ns_memrealtime s[64:65]")
    a("""
    s_load_dwordx2 s[32:33], s[0:1], 80
    v_lshrrev_b32 v2, 6, v0
    v_and_b32 v0, 63, v0
    v_lshlrev_b32 v1, 4, v0
    v_readfirstlane_b32 s3, v2
    s_and_b32 s6, s2, 7
    s_lshr_b32 s7, s2, 3
    s_mov_b32 s66, s3
    """)
    a(f"""
    s_mov_b32 s34, {WS_END}
    s_mov_b32 s35, 0x00020000
    s_cmp_ge_u32 s3, 8
    s_cbranch_scc1 K2_GEMM
    """)
    emit_attn(a, P)
    emit_gemm(a, P)
    a.label("K2_END")
    a("s_endpgm")

def step_order(P):
    order = [(kt, qt) for kt in range(8) for qt in range(4)]
    if P.get("k2_tail", 1):
        order = order[:24] + [(6, 0), (6, 1), (7, 0), (7, 1), (6, 2), (7, 2), (6, 3), (7, 3)]
    return order

def emit_attn(a, P):
    vm = Counter("vmcnt", 63)
    ST = P.get("k2_store", "")
    a(f"""
    s_lshl_b32 s4, s6, 1
    s_and_b32 s8, s7, 1
    s_add_u32 s4, s4, s8
    s_lshr_b32 s5, s7, 1
    s_lshl_b32 s8, s4, 6
    s_lshl_b32 s9, s5, 2
    s_add_u32 s9, s9, s8
    s_lshl_b32 s10, s9, 11
    s_add_u32 s11, s10, 4096
    s_lshl_b32 s9, s3, 3
    s_add_u32 s9, s9, s8
    s_lshl_b32 s12, s9, 12
    s_add_u32 s12, s12, {WS_KV}
    s_mov_b32 s14, 0
    s_waitcnt lgkmcnt(0)
    """)
    if P.get("k2_aprio"): a(f"s_setprio {P['k2_aprio']}")
    ids = {}
    def ldq(qt):
        so = "s10" if qt < 2 else "s11"
        for t in range(2):
            a(f"buffer_load_dwordx4 v[{Q0+8*qt+4*t}:{Q0+8*qt+4*t+3}], v1, s[32:35], {so} offen offset:{(qt&1)*2048+t*1024}")
            ids[("q", qt)] = vm.issue()
    def ldkv(kind, kt):
        base = (KB if kind == "k" else VB) + 8 * (kt & 1)
        a(f"s_add_u32 s13, s12, {kt*4096}")
        for t in range(2):
            a(f"buffer_load_dwordx4 v[{base+4*t}:{base+4*t+3}], v1, s[32:35], s13 offen offset:{(0 if kind=='k' else 2048)+t*1024}")
            ids[(kind, kt)] = vm.issue()
    ldq(0); ldkv("k", 0); ldq(1); ldq(2); ldq(3)
    a("s_barrier")
    stamp(a, P, 40)
    a.label("K2_RUN")
    ldkv("v", 0); ldkv("k", 1); ldkv("v", 1)
    order = step_order(P)
    n = len(order)
    lastk = {}; lastv = {}; lastq = {}; firstq = {}
    for i, (kt, qt) in enumerate(order):
        lastk[kt] = i; lastq[qt] = i
        firstq.setdefault(qt, i)
    def qk(i):
        kt, qt = order[i]
        S = S0 + 16 * (i & 1); K = KB + 8 * (kt & 1); Q = Q0 + 8 * qt
        return [("w", max(ids[("k", kt)], ids[("q", qt)])),
                f"v_mfma_f32_32x32x16_bf16 v[{S}:{S+15}], v[{K}:{K+3}], v[{Q}:{Q+3}], 0",
                f"v_mfma_f32_32x32x16_bf16 v[{S}:{S+15}], v[{K+4}:{K+7}], v[{Q+4}:{Q+7}], v[{S}:{S+15}]"]
    def pv(i):
        kt, qt = order[i]
        S = S0 + 16 * (i & 1); V = VB + 8 * (kt & 1); O = O0 + 16 * qt
        c = "0" if firstq[qt] == i else f"v[{O}:{O+15}]"
        return [("w", ids[("v", kt)]),
                f"v_mfma_f32_32x32x16_bf16 v[{O}:{O+15}], v[{V}:{V+3}], v[{S}:{S+3}], {c}",
                f"v_mfma_f32_32x32x16_bf16 v[{O}:{O+15}], v[{V+4}:{V+7}], v[{S+4}:{S+7}], v[{O}:{O+15}]"]
    def emit(x):
        if isinstance(x, tuple): vm.wait_for(a, x[1])
        else: a(x)
    wl = {"n": 0}
    def owrite(qt):
        O = O0 + 16 * qt
        for t in range(2):
            r = 2 * qt + t
            lab = f"K2_SKW{wl['n']}"; wl["n"] += 1
            hi = 0x10000 if r * 14336 + 1024 >= 65536 else 0
            a(f"""
            s_sub_u32 s15, s3, {r+1}
            s_and_b32 s15, s15, 7
            s_lshl_b32 s16, s15, 11
            """)
            if hi: a("s_add_u32 s16, s16, 0x10000")
            a(f"""
            v_add_u32 v{T0}, s16, v1
            s_cmp_eq_u32 s15, 7
            s_cbranch_scc1 {lab}
            """)
            a.opt(1)
            a(f"""
            ds_write_b128 v{T0}, v[{O+8*t}:{O+8*t+3}] offset:{r*14336 - hi}
            ds_write_b128 v{T0}, v[{O+8*t+4}:{O+8*t+7}] offset:{r*14336 + 1024 - hi}
            """)
            a.opt(0)
            a.label(lab)
        a(f"ds_write_b32 v{T0+1}, v{O+12} offset:{qt*2048}")
    a(f"""
    s_lshl_b32 s15, s3, 2
    s_add_u32 s15, s15, {LREG}
    v_lshl_add_u32 v{T0+1}, v0, 5, s15
    """)
    for x in qk(0): emit(x)
    pend_w = []
    for i in range(n + 1):
        stamp(a, P, i)
        if i < n:
            S = S0 + 16 * (i & 1)
            ex = [f"v_exp_f32 v{S+j}, v{S+j}" for j in range(16)]
            cv = [f"v_cvt_pk_bf16_f32 v{S+j}, v{S+2*j}, v{S+2*j+1}" for j in range(8)]
        else:
            ex = []; cv = []
        p = pv(i - 1) if i >= 1 else [None, None, None]
        q = qk(i + 1) if i + 1 < n else [None, None, None]
        seq = [p[0], p[1]] + ex[0:3] + [p[2]] + ex[3:6] + cv[0:1] + [q[0], q[1]] + ex[6:9] + cv[1:3] + [q[2]] + ex[9:16] + cv[3:8]
        post = []
        for x in seq:
            if x is None: continue
            emit(x)
            if x is p[2]:
                kt, qt = order[i - 1]
                if lastk[kt] == i - 1 and kt + 2 < 8: ldkv("v", kt + 2)
                if pend_w:
                    owrite(pend_w.pop(0))
                if lastq[qt] == i - 1: pend_w.append(qt)
            if x is q[2]:
                kt, qt = order[i + 1]
                if lastk[kt] == i + 1 and kt + 2 < 8: ldkv("k", kt + 2)
    while pend_w: owrite(pend_w.pop(0))
    stamp(a, P, 41)
    for r in range(8):
        a(f"s_cmp_lg_u32 s3, {r}\ns_cbranch_scc1 K2_OWN{r}")
        a.opt(1)
        for j in range(8): a(f"v_mov_b32 v{S0+j}, v{O0+8*r+j}")
        a.opt(0)
        a.label(f"K2_OWN{r}")
    a(f"""
    s_mul_i32 s15, s3, 14336
    v_add_u32 v{T0}, s15, v1
    s_lshr_b32 s16, s3, 1
    s_lshl_b32 s17, s16, 11
    s_add_u32 s17, s17, {LREG + 1024}
    v_and_b32 v{T0+2}, 31, v0
    v_lshl_add_u32 v{T0+2}, v{T0+2}, 5, s17
    s_waitcnt lgkmcnt(0)
    s_barrier
    """)
    stamp(a, P, 42)
    lg = Counter("lgkmcnt", 15)
    a(f"ds_read_b128 v[{S0+8}:{S0+11}], v{T0+2}"); lg.issue()
    a(f"ds_read_b128 v[{S0+12}:{S0+15}], v{T0+2} offset:16"); lid = lg.issue()
    rid = []
    for s in range(6):
        for u in range(2):
            a(f"ds_read_b128 v[{O0+8*s+4*u}:{O0+8*s+4*u+3}], v{T0} offset:{s*2048+u*1024}")
            x = lg.issue()
        rid.append(x)
    lg.wait_for(a, lid)
    s = 6
    for u in range(2):
        a(f"ds_read_b128 v[{O0+8*s+4*u}:{O0+8*s+4*u+3}], v{T0} offset:{s*2048+u*1024}")
        x = lg.issue()
    rid.append(x)
    L = S0 + 8
    a(f"""
    v_add_f32 v{L}, v{L}, v{L+1}
    v_add_f32 v{L+2}, v{L+2}, v{L+3}
    v_add_f32 v{L+4}, v{L+4}, v{L+5}
    v_add_f32 v{L+6}, v{L+6}, v{L+7}
    v_add_f32 v{L}, v{L}, v{L+2}
    v_add_f32 v{L+4}, v{L+4}, v{L+6}
    v_add_f32 v{L}, v{L}, v{L+4}
    v_rcp_f32 v{L+1}, v{L}
    """)
    for s in range(7):
        lg.wait_for(a, rid[s])
        for j in range(8): a(f"v_add_f32 v{S0+j}, v{S0+j}, v{O0+8*s+j}")
    a(f"""
    s_and_b32 s15, s3, 1
    s_lshl_b32 s15, s15, 5
    s_sub_u32 s15, 64, s15
    v_cmp_gt_u32 vcc, s15, v0
    """)
    for j in range(8): a(f"v_mul_f32 v{S0+j}, v{S0+j}, v{L+1}")
    for j in range(4, 8): a(f"v_cndmask_b32 v{S0+j}, 0, v{S0+j}, vcc")
    a(f"""
    v_max3_f32 v{L+2}, |v{S0}|, |v{S0+1}|, |v{S0+2}|
    v_max3_f32 v{L+3}, |v{S0+3}|, |v{S0+4}|, |v{S0+5}|
    v_add_f32 v{L+4}, v{S0}, v{S0+1}
    v_add_f32 v{L+5}, v{S0+2}, v{S0+3}
    v_add_f32 v{L+6}, v{S0+4}, v{S0+5}
    v_add_f32 v{L+7}, v{S0+6}, v{S0+7}
    v_max3_f32 v{L+2}, v{L+2}, |v{S0+6}|, |v{S0+7}|
    v_add_f32 v{L+4}, v{L+4}, v{L+5}
    v_add_f32 v{L+6}, v{L+6}, v{L+7}
    v_max_f32 v{L+2}, v{L+2}, v{L+3}
    v_add_f32 v{L+4}, v{L+4}, v{L+6}
    s_mov_b32 s26, {f32hex(2.0**-30)}
    s_mov_b32 s27, {f32hex(2.0**30)}
    s_mov_b32 s28, {f32hex(2.0**120)}
    v_cmp_le_f32 s[18:19], s26, v{L}
    v_cmp_ge_f32 s[20:21], s27, v{L}
    v_cmp_ge_f32 s[22:23], s28, v{L+2}
    v_cmp_o_f32 s[24:25], v{L+4}, v{L+4}
    """)
    for j in range(4): a(f"v_cvt_pk_bf16_f32 v{S0+j}, v{S0+2*j}, v{S0+2*j+1}")
    a(f"""
    s_and_b64 s[18:19], s[18:19], s[20:21]
    s_and_b64 s[22:23], s[22:23], s[24:25]
    s_and_b64 s[18:19], s[18:19], s[22:23]
    s_lshl_b32 s15, s5, 2
    s_add_u32 s15, s15, s16
    s_mul_i32 s15, s15, {HSTR}
    s_lshl_b32 s16, s4, 1
    s_and_b32 s17, s3, 1
    s_add_u32 s16, s16, s17
    s_lshl_b32 s16, s16, 10
    s_add_u32 s15, s15, s16
    s_add_u32 s15, s15, {WS_H + 112*1024}
    buffer_store_dwordx4 v[{S0}:{S0+3}], v1, s[32:35], s15 offen{ST}
    """)
    stamp(a, P, 43)
    stamp_out(a, P)
    a(f"""
    s_cmp_lg_u32 s14, 0
    s_cbranch_scc1 K2_END
    s_not_b64 s[18:19], s[18:19]
    s_cmp_eq_u64 s[18:19], 0
    s_cbranch_scc1 K2_OKW
    v_mov_b32 v{T0}, {FLAG + 64}
    v_mov_b32 v{T0+2}, 1
    ds_write_b32 v{T0}, v{T0+2}
    """)
    a.label("K2_OKW")
    a(f"""
    v_mov_b32 v{T0}, {FLAG + 64}
    s_waitcnt lgkmcnt(0)
    s_barrier
    ds_read_b32 v{T0+2}, v{T0}
    s_waitcnt lgkmcnt(0)
    v_readfirstlane_b32 s15, v{T0+2}
    s_cmp_eq_u32 s15, 0
    s_cbranch_scc1 K2_END
    """)
    a.fence()
    M = O0
    a("s_waitcnt vmcnt(0)\ns_mov_b32 s14, 1\ns_mov_b32 s13, s12\ns_mov_b32 s15, 8")
    for qt in range(4): a(f"v_mov_b32 v{M+qt}, 0xff800000")
    a.label("K2_MXL")
    a.fence()
    a(f"""
    buffer_load_dwordx4 v[{KB}:{KB+3}], v1, s[32:35], s13 offen
    buffer_load_dwordx4 v[{KB+4}:{KB+7}], v1, s[32:35], s13 offen offset:1024
    s_waitcnt vmcnt(0)
    """)
    for qt in range(4):
        Q = Q0 + 8 * qt; S = S0
        a(f"v_mfma_f32_32x32x16_bf16 v[{S}:{S+15}], v[{KB}:{KB+3}], v[{Q}:{Q+3}], 0")
        a(f"v_mfma_f32_32x32x16_bf16 v[{S}:{S+15}], v[{KB+4}:{KB+7}], v[{Q+4}:{Q+7}], v[{S}:{S+15}]")
        for j in range(8): a(f"v_max3_f32 v{M+qt}, v{M+qt}, v{S+2*j}, v{S+2*j+1}")
    a("""
    s_add_u32 s13, s13, 4096
    s_sub_u32 s15, s15, 1
    s_cmp_lg_u32 s15, 0
    s_nop 7
    s_cbranch_scc1 K2_MXL
    """)
    for qt in range(4): a(f"ds_write_b32 v{T0+1}, v{M+qt} offset:{qt*2048}")
    a(f"""
    v_and_b32 v{T0+2}, 31, v0
    v_lshlrev_b32 v{T0+2}, 5, v{T0+2}
    v_add_u32 v{T0+2}, {LREG}, v{T0+2}
    v_cmp_le_u32 vcc, 32, v0
    s_waitcnt lgkmcnt(0)
    s_barrier
    """)
    for qt in range(4):
        S = S0
        for u in range(4):
            a(f"ds_read_b128 v[{S+4*u}:{S+4*u+3}], v{T0+2} offset:{qt*2048 + (u>>1)*1024 + (u&1)*16}")
        a("s_waitcnt lgkmcnt(0)")
        m = M + 4
        a(f"v_max_f32 v{m}, v{S}, v{S+1}")
        for j in range(1, 8): a(f"v_max3_f32 v{m}, v{m}, v{S+2*j}, v{S+2*j+1}")
        Q = Q0 + 8 * qt
        a(f"""
        v_mul_f32 v{m}, -1.0, v{m}
        v_and_b32 v{m+1}, 0xffff0000, v{m}
        v_sub_f32 v{m}, v{m}, v{m+1}
        v_and_b32 v{m+2}, 0xffff0000, v{m}
        v_sub_f32 v{m}, v{m}, v{m+2}
        v_lshrrev_b32 v{m+1}, 16, v{m+1}
        v_or_b32 v{m+1}, v{m+1}, v{m+2}
        v_lshrrev_b32 v{m}, 16, v{m}
        v_cndmask_b32 v{Q+6}, v{Q+6}, v{m+1}, vcc
        v_cndmask_b32 v{Q+7}, v{Q+7}, v{m}, vcc
        """)
    a(f"""
    buffer_load_dwordx4 v[{KB}:{KB+3}], v1, s[32:35], s12 offen
    buffer_load_dwordx4 v[{KB+4}:{KB+7}], v1, s[32:35], s12 offen offset:1024
    s_waitcnt vmcnt(0)
    s_barrier
    s_branch K2_RUN
    """)

def emit_gemm(a, P):
    KS2 = P.get("ks2", 96)
    assert KS2 % 4 == 0
    KQ = KS2 // 4
    DEP = P.get("k2_gdepth", 5 if P.get("stamp2") else 6)
    ST = P.get("k2_bstore", "")
    a.label("K2_GEMM")
    a.fence()
    vm = Counter("vmcnt", 63)
    ACC = 2; BUF = 66
    TA = 160 if P.get('stamp2') else 162
    a(f"""
    s_sub_u32 s3, s3, 8
    s_cmp_lg_u32 s3, 0
    s_cbranch_scc1 K2_G1
    v_lshlrev_b32 v{TA}, 2, v0
    v_mov_b32 v{TA+1}, 0
    ds_write_b32 v{TA}, v{TA+1} offset:{FLAG & 0xffff}
    """.replace(f"v_lshlrev_b32 v{TA}, 2, v0", f"v_lshlrev_b32 v{TA}, 2, v0\n v_add_u32 v{TA}, {FLAG & ~0xffff}, v{TA}"))
    a.label("K2_G1")
    if KS2 == 0:
        a("s_waitcnt lgkmcnt(0)\ns_barrier\ns_endpgm")
        return
    a(f"""
    s_mul_i32 s8, s7, 37
    s_lshr_b32 s8, s8, 8
    s_mul_i32 s9, s8, 7
    s_sub_u32 s9, s7, s9
    s_lshl_b32 s10, s6, 2
    s_add_u32 s8, s8, s10
    s_and_b32 s10, s3, 1
    s_lshr_b32 s11, s3, 1
    s_mul_i32 s12, s3, {KQ*1024}
    s_lshl_b32 s13, s9, 1
    s_add_u32 s14, s13, s10
    s_xor_b32 s15, s14, 1
    s_mul_i32 s14, s14, {HSTR}
    s_mul_i32 s15, s15, {HSTR}
    s_add_u32 s14, s14, s12
    s_add_u32 s15, s15, s12
    s_add_u32 s14, s14, {WS_W2}
    s_add_u32 s15, s15, {WS_W2}
    s_lshl_b32 s13, s8, 1
    s_add_u32 s16, s13, s11
    s_xor_b32 s17, s16, 1
    s_mul_i32 s16, s16, {HSTR}
    s_mul_i32 s17, s17, {HSTR}
    s_add_u32 s16, s16, s12
    s_add_u32 s17, s17, s12
    s_add_u32 s16, s16, {WS_H}
    s_add_u32 s17, s17, {WS_H}
    s_waitcnt lgkmcnt(0)
    s_cmp_ge_u32 s7, 28
    s_cbranch_scc0 K2_G2
    s_barrier
    s_endpgm
    """)
    a.label("K2_G2")
    if P.get("k2_gprio"): a(f"s_setprio {P['k2_gprio']}")
    ids = {}
    def ld(k):
        b = BUF + 16 * (k % DEP)
        if k and k % 4 == 0:
            for s in (14, 15, 16, 17): a(f"s_add_u32 s{s}, s{s}, 4096")
        for i, s in enumerate((14, 16, 15, 17)):
            a(f"buffer_load_dwordx4 v[{b+4*i}:{b+4*i+3}], v1, s[32:35], s{s} offen offset:{(k&3)*1024}")
            ids[(k, i)] = vm.issue()
    pre = P.get("k2_gpre", 2)
    for k in range(min(pre, KQ)): ld(k)
    a("s_barrier")
    for k in range(pre, min(DEP, KQ)): ld(k)
    for k in range(KQ):
        stamp(a, P, k)
        b = BUF + 16 * (k % DEP)
        A = [f"v[{b}:{b+3}]", f"v[{b+8}:{b+11}]"]; B = [f"v[{b+4}:{b+7}]", f"v[{b+12}:{b+15}]"]
        for (x, y, need) in ((0, 0, 1), (1, 0, 2), (0, 1, 3), (1, 1, 3)):
            vm.wait_for(a, ids[(k, need)])
            acc = ACC + 16 * (2 * x + y)
            c = "0" if k == 0 else f"v[{acc}:{acc+15}]"
            a(f"v_mfma_f32_32x32x16_bf16 v[{acc}:{acc+15}], {A[x]}, {B[y]}, {c}")
        if k + DEP < KQ: ld(k + DEP)
    stamp(a, P, 41)
    a(f"""
    s_lshl_b32 s18, s3, 13
    s_add_u32 s18, s18, {GREG}
    v_add_u32 v{TA}, s18, v1
    s_xor_b32 s19, s3, 1
    s_lshl_b32 s19, s19, 13
    s_add_u32 s19, s19, {GREG}
    v_add_u32 v{TA+1}, s19, v1
    s_xor_b32 s19, s3, 3
    s_lshl_b32 s19, s19, 13
    s_add_u32 s19, s19, {GREG}
    v_add_u32 v{TA+2}, s19, v1
    s_lshl_b32 s18, s3, 2
    s_add_u32 s18, s18, {FLAG}
    v_mov_b32 v{TA+3}, s18
    v_xor_b32 v{TA+4}, 4, v{TA+3}
    v_mov_b32 v{TA+5}, 1
    """)
    for r in range(8): a(f"ds_write_b128 v{TA}, v[{ACC+32+4*r}:{ACC+35+4*r}] offset:{r*1024}")
    a(f"s_waitcnt lgkmcnt(0)\nds_write_b32 v{TA+3}, v{TA+5}")
    def spin(lab, areg, off):
        a.label(lab)
        a(f"""
        ds_read_b32 v{BUF}, v{areg} offset:{off}
        s_waitcnt lgkmcnt(0)
        v_readfirstlane_b32 s18, v{BUF}
        s_cmp_lg_u32 s18, 0
        s_cbranch_scc1 {lab}D
        s_sleep 1
        s_branch {lab}
        """)
        a.label(lab + "D")
    spin("K2_SP1", TA + 4, 0)
    for r in range(8): a(f"ds_read_b128 v[{BUF+4*r}:{BUF+4*r+3}], v{TA+1} offset:{r*1024}")
    a("s_waitcnt lgkmcnt(0)")
    for j in range(16, 32): a(f"v_add_f32 v{ACC+j}, v{ACC+j}, v{BUF+j}")
    for r in range(4): a(f"ds_write_b128 v{TA+1}, v[{ACC+16+4*r}:{ACC+19+4*r}] offset:{r*1024}")
    a(f"v_xor_b32 v{TA+4}, 8, v{TA+3}")
    for j in range(16): a(f"v_add_f32 v{ACC+j}, v{ACC+j}, v{BUF+j}")
    a(f"s_waitcnt lgkmcnt(0)\nds_write_b32 v{TA+3}, v{TA+5} offset:16")
    spin("K2_SP2", TA + 4, 16)
    for r in range(4): a(f"ds_read_b128 v[{BUF+4*r}:{BUF+4*r+3}], v{TA+2} offset:{r*1024}")
    a(f"""
    s_mul_i32 s18, s8, 7
    s_add_u32 s18, s18, s9
    s_lshl_b32 s18, s18, 2
    s_add_u32 s18, s18, s3
    s_lshl_b32 s18, s18, 12
    s_add_u32 s18, s18, {WS_B}
    s_waitcnt lgkmcnt(0)
    """)
    for j in range(16): a(f"v_add_f32 v{ACC+j}, v{ACC+j}, v{BUF+j}")
    for r in range(4): a(f"buffer_store_dwordx4 v[{ACC+4*r}:{ACC+4*r+3}], v1, s[32:35], s18 offen offset:{r*1024}{ST}")
    stamp(a, P, 43)
    stamp_out(a, P)
    a("s_endpgm")
```

```python
import sys, json
sys.path.insert(0, "gen")
from asmlib import Asm
import k1

HEADER = """; gated_mix__softmax_full_mha__glu_gated_glu__prompt : generated CDNA4 assembly (gen/gen.py)
"""

def desc(name, vgpr, sgpr=96):
    acc = (vgpr + 3) // 4 * 4
    return f""".amdhsa_kernel {name}
  .amdhsa_next_free_vgpr {vgpr}
  .amdhsa_next_free_sgpr {sgpr}
  .amdhsa_accum_offset {acc}
  .amdhsa_group_segment_fixed_size 0
  .amdhsa_kernarg_size 88
  .amdhsa_user_sgpr_count 2
  .amdhsa_user_sgpr_kernarg_segment_ptr 1
  .amdhsa_system_sgpr_workgroup_id_x 1
.end_amdhsa_kernel
"""

def build(P):
    kernels = P.get("kernels", ["k1", "k2", "k3"])
    a = Asm()
    launches = []
    descs = []
    if "k1" in kernels:
        k1.emit_k1(a, P)
        launches.append(f"; @launch kernel=k1_kernel grid=(256,1,1) block=(512,1,1) lds={k1.K1_LDS}")
        descs.append(desc("k1_kernel", 256))
    if "k2" in kernels:
        import k2
        k2.emit_k2(a, P)
        launches.append(f"; @launch kernel=k2_kernel grid=(256,1,1) block=(768,1,1) lds={k2.k2_lds(P)}")
        descs.append(desc("k2_kernel", 168))
    if "k3" in kernels:
        import k3
        k3.emit_k3(a, P)
        launches.append(f"; @launch kernel=k3_kernel grid=(224,1,1) block=(256,1,1) lds={k3.k3_lds(P)}")
        descs.append(desc("k3_kernel", 128))
    for i in range(P.get("nempty", 0)):
        a.raw(f".p2align 8\n.globl e{i}_kernel\n.type e{i}_kernel,@function")
        a.label(f"e{i}_kernel")
        a("s_endpgm")
        launches.append(f"; @launch kernel=e{i}_kernel grid=(256,1,1) block=(256,1,1) lds=0")
        descs.append(desc(f"e{i}_kernel", 8))
    if P.get("dup"):
        launches = launches * P["dup"]
    body = a.render()
    s = HEADER + "\n".join(launches) + "\n"
    s += '.amdgcn_target "amdgcn-amd-amdhsa--gfx950"\n.text\n' + body
    s += '.section .rodata,"a"\n'
    for d in descs:
        s += ".p2align 6\n" + d
    return s, a.nops

if __name__ == "__main__":
    out = sys.argv[1]
    P = json.loads(sys.argv[2]) if len(sys.argv) > 2 else {}
    s, nn = build(P)
    open(out, "w").write(s)
    print("wrote", out, len(s), "bytes; auto nops:", nn)
```
